```python
import torch

def _softmax(x, axis=-1):
    return torch.softmax(x, dim=axis)

def _gelu(x):
    return torch.nn.functional.gelu(x, approximate='tanh')

def _silu(x):
    return torch.nn.functional.silu(x)

def _sigmoid(x):
    return torch.sigmoid(x)

def _layernorm(x, axis=-1, eps=1e-05):
    m = x.mean(dim=axis, keepdim=True)
    v = x.var(dim=axis, keepdim=True, unbiased=False)
    return (x - m) / torch.sqrt(v + eps)

def _scatter_add(tgt, idx, src, axis=0):
    return tgt.clone().index_add_(axis, idx, src)

def _segment_sum(src, seg, n):
    out = torch.zeros((n,) + src.shape[1:], dtype=src.dtype)
    return out.index_add_(0, seg, src)

def _pad(x, pw):
    flat = tuple((v for pair in reversed(pw) for v in pair))
    return torch.nn.functional.pad(x, flat)
kernel_name = 'adaLN_cond__spectral_fnet__dense_activation_relu__prompt'

def setup_inputs():

    _w = lambda a: (lambda t: t.to(torch.bfloat16) if t.is_floating_point() else t)(torch.as_tensor(a))

    def _A_setup():
        B, S, D = (1, 2048, 512)
        ns = torch.arange(S)[:, None] * torch.arange(S)[None, :]
        nd = torch.arange(D)[:, None] * torch.arange(D)[None, :]
        Ws_re = torch.cos(-2.0 * torch.pi * ns / S).to(float)
        Ws_im = torch.sin(-2.0 * torch.pi * ns / S).to(float)
        Wd_re = torch.cos(-2.0 * torch.pi * nd / D).to(float)
        Wd_im = torch.sin(-2.0 * torch.pi * nd / D).to(float)
        return {'x': _w((lambda *s: torch.randn(*s, dtype=torch.bfloat16) * 0.1)(B, S, D)), 'dft_seq_re': _w(Ws_re), 'dft_seq_im': _w(Ws_im), 'dft_hid_re': _w(Wd_re), 'dft_hid_im': _w(Wd_im)}
    _A_in = _A_setup()

    def _B_setup():
        B, S, D, Dff = (1, 2048, 512, 1376)
        return {'x': _w((lambda *s: torch.randn(*s, dtype=torch.bfloat16) * 0.1)(B, S, D)), 'w1': _w((lambda *s: torch.randn(*s, dtype=torch.bfloat16) * 3.2)(D, Dff)), 'w2': _w((lambda *s: torch.randn(*s, dtype=torch.bfloat16) * 3.2)(Dff, D))}
    _B_in = _B_setup()
    return {'A_x': _A_in['x'], 'A_dft_seq_re': _A_in['dft_seq_re'], 'A_dft_seq_im': _A_in['dft_seq_im'], 'A_dft_hid_re': _A_in['dft_hid_re'], 'A_dft_hid_im': _A_in['dft_hid_im'], 'B_x': _B_in['x'], 'B_w1': _B_in['w1'], 'B_w2': _B_in['w2'], 'c': _w((lambda *s: torch.randn(*s, dtype=torch.bfloat16) * 0.2)(1, 512) * 8.0), 'w_mod': _w((lambda *s: torch.randn(*s, dtype=torch.bfloat16) * 0.2)(512, 6 * 512) * 512 ** (-0.5) * 8.0)}

def reference(A_x, A_dft_seq_re, A_dft_seq_im, A_dft_hid_re, A_dft_hid_im, B_x, B_w1, B_w2, c, w_mod):

    def _A_ref(x, dft_seq_re, dft_seq_im, dft_hid_re, dft_hid_im):
        a = torch.einsum('bsd,ed->bse', x, dft_hid_re)
        b = torch.einsum('bsd,ed->bse', x, dft_hid_im)
        y = torch.einsum('ts,bse->bte', dft_seq_re, a) - torch.einsum('ts,bse->bte', dft_seq_im, b)
        return y

    def _B_ref(x, w1, w2):
        h = torch.einsum('bsd,df->bsf', x, w1)
        zero = torch.zeros_like(h)
        h = torch.maximum(h, zero)
        return torch.einsum('bsf,fd->bsd', h, w2)
    x = A_x
    mod = (_silu(c) @ w_mod).reshape(c.shape[0], 6, 1, -1)
    sa, ca, ga, sb, cb, gb = (mod[:, 0].clone(), mod[:, 1].clone(), mod[:, 2].clone(), mod[:, 3].clone(), mod[:, 4].clone(), mod[:, 5].clone())
    h = _layernorm(x, axis=-1) * (1 + ca) + sa
    x = x + ga * _A_ref(h, A_dft_seq_re, A_dft_seq_im, A_dft_hid_re, A_dft_hid_im)
    h = _layernorm(x, axis=-1) * (1 + cb) + sb
    x = x + gb * _B_ref(h, B_w1, B_w2)
    return x
```

```python
import sys

NAME = "adaLN_cond__spectral_fnet__dense_activation_relu__prompt"

WS_XH = 0
WS_PQ = 2 << 20
WS_X1 = 6 << 20
WS_X1G = 8 << 20
WS_HH = 10 << 20
WS_ST = 16 << 20
WS_MODF = 17 << 20
WS_MOD16 = (17 << 20) + (16 << 10)
WS_SIZE = 18 << 20

KA_X, KA_WSR, KA_WSI, KA_WDR, KA_WDI, KA_BX, KA_W1, KA_W2, KA_C, KA_WMOD, KA_OUT, KA_DBG, KA_WS = \
    [8 * i for i in range(13)]


class Asm:
    def __init__(self):
        self.lines = []

    def __call__(self, s):
        for l in s.strip("\n").split("\n"):
            self.lines.append("    " + l.strip())

    def label(self, name):
        self.lines.append(name + ":")

    def raw(self, s):
        self.lines.append(s)

    def text(self):
        return "\n".join(self.lines) + "\n"


class VM:
    def __init__(self):
        self.q = []

    def issue(self, tag):
        self.q.append(tag)

    def need(self, tags):
        last = -1
        for i, t in enumerate(self.q):
            if t in tags:
                last = i
        if last < 0:
            return None
        n = len(self.q) - 1 - last
        self.q = self.q[last + 1:]
        assert n <= 63
        return n


def vr(b, n=4):
    return f"v[{b}:{b + n - 1}]"


def ar(b, n=4):
    return f"a[{b}:{b + n - 1}]"


def sr(b, n=4):
    return f"s[{b}:{b + n - 1}]"


def srd(a, d, base, nbytes):
    a(f"""
    s_mov_b32 s{d}, s{base}
    s_and_b32 s{d + 1}, s{base + 1}, 0xffff
    s_mov_b32 s{d + 2}, {nbytes}
    s_mov_b32 s{d + 3}, 0x00020000
    """)


def kernel_head(a, name):
    a.raw(f".globl {name}")
    a.raw(".p2align 8")
    a.raw(f".type {name},@function")
    a.label(name)


def kernel_desc(name, vgpr, agpr, sgpr=96):
    acc = (vgpr + 3) // 4 * 4
    nfv = acc + agpr if agpr else vgpr
    return f"""
.p2align 6
.amdhsa_kernel {name}
  .amdhsa_next_free_vgpr {nfv}
  .amdhsa_next_free_sgpr {sgpr}
  .amdhsa_accum_offset {acc}
  .amdhsa_group_segment_fixed_size 0
  .amdhsa_kernarg_size 104
  .amdhsa_user_sgpr_count 2
  .amdhsa_user_sgpr_kernarg_segment_ptr 1
  .amdhsa_system_sgpr_workgroup_id_x 1
  .amdhsa_float_denorm_mode_32 3
  .amdhsa_float_denorm_mode_16_64 3
.end_amdhsa_kernel
"""


def wave_allreduce(a, regs, tmps):
    for sh in (8, 4, 2, 1):
        a("s_nop 1")
        for r in regs:
            a(f"v_add_f32_dpp v{r}, v{r}, v{r} row_ror:{sh} row_mask:0xf bank_mask:0xf")
    for op in ("v_permlane16_swap_b32", "v_permlane32_swap_b32"):
        for r, t in zip(regs, tmps):
            a(f"v_mov_b32 v{t}, v{r}")
        a("s_nop 1")
        for r, t in zip(regs, tmps):
            a(f"{op} v{r}, v{t}")
        a("s_nop 1")
        for r, t in zip(regs, tmps):
            a(f"v_add_f32 v{r}, v{r}, v{t}")


def gen_k0(a):
    name = "k0_kernel"
    kernel_head(a, name)
    a(f"""
    s_cmp_ge_u32 s2, 352
    s_cbranch_scc1 K0_END
    s_load_dwordx2 s[4:5], s[0:1], {KA_X}
    s_load_dwordx4 s[8:11], s[0:1], {KA_C}
    s_load_dwordx2 s[6:7], s[0:1], {KA_WS}
    s_waitcnt lgkmcnt(0)
    """)
    srd(a, 16, 6, WS_SIZE)
    a("s_cmp_ge_u32 s2, 96")
    a("s_cbranch_scc1 K0_LN")
    srd(a, 20, 8, 1024)
    srd(a, 24, 10, 512 * 3072 * 2)
    a(f"""
    s_and_b32 s3, s2, 7
    s_lshr_b32 s12, s2, 3
    s_lshr_b32 s13, s12, 1
    s_lshl_b32 s13, s13, 3
    s_add_u32 s13, s13, s3
    s_lshl_b32 s13, s13, 1
    s_and_b32 s12, s12, 1
    s_add_u32 s13, s13, s12          ; cg 0..95
    s_lshl_b32 s14, s13, 6
    v_lshrrev_b32 v1, 2, v0          ; r
    v_and_b32 v2, 3, v0              ; c4
    v_lshlrev_b32 v3, 1, v1          ; r*2 : c offset
    v_mul_u32_u24 v4, 6144, v1
    v_lshl_add_u32 v4, v2, 4, v4     ; r*6144 + c4*16
    """)
    for i in range(8):
        a(f"buffer_load_ushort v{8 + i}, v3, s[20:23], 0 offen offset:{i * 128}")
    for i in range(8):
        if i == 0:
            a("s_mov_b32 s15, s14")
        else:
            a(f"s_add_u32 s15, s14, {i * 64 * 6144}")
        a(f"buffer_load_dwordx4 {vr(16 + 4 * i)}, v4, s[24:27], s15 offen")
    a("s_waitcnt vmcnt(8)")
    for i in range(8):
        a(f"v_lshlrev_b32 v{8 + i}, 16, v{8 + i}")
    for i in range(8):
        a(f"v_mul_f32 v{48 + i}, 0xbfb8aa3b, v{8 + i}")
    for i in range(8):
        a(f"v_exp_f32 v{48 + i}, v{48 + i}")
    a("s_nop 0")
    for i in range(8):
        a(f"v_add_f32 v{48 + i}, 1.0, v{48 + i}")
    for i in range(8):
        a(f"v_rcp_f32 v{48 + i}, v{48 + i}")
    a("s_nop 0")
    for i in range(8):
        a(f"v_mul_f32 v{8 + i}, v{8 + i}, v{48 + i}")
    for i in range(8):
        a(f"v_cvt_pk_bf16_f32 v{8 + i}, v{8 + i}, v{8 + i}")
    for i in range(8):
        a(f"v_lshlrev_b32 v{8 + i}, 16, v{8 + i}")
    for i in range(8):
        a(f"s_waitcnt vmcnt({7 - i})")
        for k in range(4):
            w = 16 + 4 * i + k
            a(f"v_lshlrev_b32 v48, 16, v{w}")
            a(f"v_and_b32 v49, 0xffff0000, v{w}")
            if i == 0:
                a(f"v_mul_f32 v{56 + 2 * k}, v{8 + i}, v48")
                a(f"v_mul_f32 v{57 + 2 * k}, v{8 + i}, v49")
            else:
                a(f"v_fmac_f32 v{56 + 2 * k}, v{8 + i}, v48")
                a(f"v_fmac_f32 v{57 + 2 * k}, v{8 + i}, v49")
    for sh in (4, 8):
        a("s_nop 1")
        for k in range(8):
            a(f"v_add_f32_dpp v{56 + k}, v{56 + k}, v{56 + k} row_ror:{sh} row_mask:0xf bank_mask:0xf")
    a(f"""
    v_lshrrev_b32 v5, 4, v0
    v_lshlrev_b32 v5, 7, v5
    v_lshl_add_u32 v5, v2, 5, v5      ; (t>>4)*128 + c4*32
    ds_write_b128 v5, v[56:59]
    ds_write_b128 v5, v[60:63] offset:16
    s_waitcnt lgkmcnt(0)
    s_barrier
    v_and_b32 v6, 31, v0
    v_lshlrev_b32 v5, 2, v6
    """)
    for p in range(16):
        a(f"ds_read_b32 v{16 + p}, v5 offset:{p * 128}")
    a(f"""
    s_lshr_b32 s12, s13, 4
    s_mov_b32 s15, 0
    s_cmp_eq_u32 s12, 1
    s_cselect_b32 s15, 1.0, s15
    s_cmp_eq_u32 s12, 4
    s_cselect_b32 s15, 1.0, s15
    s_lshl_b32 s12, s13, 7
    s_add_u32 s12, s12, {WS_MODF}
    s_add_u32 s14, s14, {WS_MOD16}
    v_lshlrev_b32 v7, 1, v6
    s_waitcnt lgkmcnt(0)
    """)
    for st in (8, 4, 2, 1):
        for p in range(st):
            a(f"v_add_f32 v{16 + p}, v{16 + p}, v{16 + p + st}")
    a(f"""
    v_cvt_pk_bf16_f32 v16, v16, v16
    v_lshlrev_b32 v16, 16, v16
    v_add_f32 v16, s15, v16
    v_cvt_pk_bf16_f32 v16, v16, v16
    v_lshlrev_b32 v17, 16, v16
    v_cmp_gt_u32 vcc, 32, v0
    s_and_saveexec_b64 s[28:29], vcc
    s_cbranch_execz K0_END
    buffer_store_dword v17, v5, s[16:19], s12 offen
    buffer_store_short v16, v7, s[16:19], s14 offen
    s_endpgm
    """)
    a.label("K0_LN")
    srd(a, 20, 4, 2048 * 512 * 2)
    a(f"""
    s_sub_u32 s3, s2, 96             ; b 0..255
    s_lshl_b32 s12, s3, 13           ; b*8 rows * 1024B
    v_lshrrev_b32 v1, 6, v0          ; wave
    v_and_b32 v2, 63, v0             ; lane
    v_lshlrev_b32 v3, 11, v1
    v_lshl_add_u32 v3, v2, 4, v3
    buffer_load_dwordx4 v[4:7], v3, s[20:23], s12 offen
    buffer_load_dwordx4 v[8:11], v3, s[20:23], s12 offen offset:1024
    v_lshlrev_b32 v40, 2, v0
    v_and_b32 v41, 15, v0            ; u
    v_and_b32 v42, 9, v41
    v_lshlrev_b32 v42, 5, v42
    v_and_b32 v43, 4, v41
    v_lshl_or_b32 v42, v43, 4, v42
    v_and_b32 v43, 2, v41
    v_lshl_or_b32 v42, v43, 6, v42   ; m*16
    v_lshrrev_b32 v43, 4, v0         ; nb
    v_lshl_or_b32 v42, v43, 17, v42  ; nb*131072 + m*16
    s_lshl_b32 s13, s3, 9            ; b*512
    s_add_u32 s13, s13, {WS_XH}
    s_mov_b32 s14, 0x05040100
    s_mov_b32 s15, 0x07060302
    """)
    for row in range(2):
        a(f"s_waitcnt vmcnt({1 - row})")
        for k in range(4):
            a(f"v_lshlrev_b32 v{12 + 8 * row + 2 * k}, 16, v{4 + 4 * row + k}")
            a(f"v_and_b32 v{13 + 8 * row + 2 * k}, 0xffff0000, v{4 + 4 * row + k}")
    for row in range(2):
        b = 12 + 8 * row
        a(f"v_add_f32 v{28 + row}, v{b}, v{b + 1}")
        a(f"v_add_f32 v{30 + row}, v{b + 2}, v{b + 3}")
        a(f"v_add_f32 v{32 + row}, v{b + 4}, v{b + 5}")
        a(f"v_add_f32 v{34 + row}, v{b + 6}, v{b + 7}")
    for row in range(2):
        a(f"v_add_f32 v{28 + row}, v{28 + row}, v{30 + row}")
        a(f"v_add_f32 v{32 + row}, v{32 + row}, v{34 + row}")
    for row in range(2):
        a(f"v_add_f32 v{28 + row}, v{28 + row}, v{32 + row}")
    wave_allreduce(a, [28, 29], [30, 31])
    for row in range(2):
        a(f"v_mul_f32 v{28 + row}, 0x3b000000, v{28 + row}")
    for row in range(2):
        b = 12 + 8 * row
        for k in range(8):
            a(f"v_sub_f32 v{b + k}, v{b + k}, v{28 + row}")
    for row in range(2):
        b = 12 + 8 * row
        a(f"v_mul_f32 v{30 + row}, v{b}, v{b}")
        a(f"v_mul_f32 v{32 + row}, v{b + 1}, v{b + 1}")
    for k in range(2, 8, 2):
        for row in range(2):
            b = 12 + 8 * row
            a(f"v_fmac_f32 v{30 + row}, v{b + k}, v{b + k}")
            a(f"v_fmac_f32 v{32 + row}, v{b + k + 1}, v{b + k + 1}")
    for row in range(2):
        a(f"v_add_f32 v{30 + row}, v{30 + row}, v{32 + row}")
    wave_allreduce(a, [30, 31], [32, 33])
    a("v_mov_b32 v34, 0x3727c5ac")
    a("v_mov_b32 v35, 0x3b000000")
    for row in range(2):
        a(f"v_fma_f32 v{30 + row}, v{30 + row}, v35, v34")
    for row in range(2):
        a(f"v_rsq_f32 v{30 + row}, v{30 + row}")
    a("s_nop 0")
    for row in range(2):
        b = 12 + 8 * row
        for k in range(8):
            a(f"v_mul_f32 v{b + k}, v{b + k}, v{30 + row}")
    for row in range(2):
        b = 12 + 8 * row
        for k in range(4):
            a(f"v_cvt_pk_bf16_f32 v{4 + 4 * row + k}, v{b + 2 * k}, v{b + 2 * k + 1}")
    a(f"""
    ds_write_b128 v3, v[4:7]
    ds_write_b128 v3, v[8:11] offset:1024
    s_waitcnt lgkmcnt(0)
    s_barrier
    """)
    for row in range(8):
        a(f"ds_read_b32 v{12 + row}, v40 offset:{row * 1024}")
    a("s_waitcnt lgkmcnt(0)")
    for k in range(4):
        a(f"v_perm_b32 v{4 + k}, v{13 + 2 * k}, v{12 + 2 * k}, s14")
        a(f"v_perm_b32 v{8 + k}, v{13 + 2 * k}, v{12 + 2 * k}, s15")
    a(f"""
    buffer_store_dwordx4 v[4:7], v42, s[16:19], s13 offen
    buffer_store_dwordx4 v[8:11], v42, s[16:19], s13 offen offset:16
    """)
    a.label("K0_END")
    a("s_endpgm")
    return name, kernel_desc(name, 64, 0), f"; @launch kernel={name} grid=(352,1,1) block=(256,1,1) lds=8192"


def gen_s1(a, NS=8):
    name = "s1_kernel"
    NIT = 32
    kernel_head(a, name)
    a(f"""
    s_cmp_ge_u32 s2, 256
    s_cbranch_scc1 S1_END
    s_load_dwordx4 s[4:7], s[0:1], {KA_WSR}
    s_load_dwordx2 s[8:9], s[0:1], {KA_WS}
    s_and_b32 s10, s2, 7             ; xcd
    s_lshr_b32 s11, s2, 3            ; j
    s_and_b32 s12, s11, 3            ; cb
    s_lshr_b32 s13, s11, 2
    s_and_b32 s13, s13, 3            ; tbl
    s_lshr_b32 s14, s11, 4           ; pq
    s_lshl_b32 s10, s10, 2
    s_add_u32 s10, s10, s13          ; tb64
    v_lshrrev_b32 v1, 6, v0
    v_and_b32 v2, 63, v0             ; lane
    s_nop 0
    v_readfirstlane_b32 s15, v1      ; wave
    s_waitcnt lgkmcnt(0)
    s_cmp_eq_u32 s14, 0
    s_cselect_b32 s4, s4, s6
    s_cselect_b32 s5, s5, s7
    """)
    srd(a, 16, 4, 2048 * 2048 * 2)
    srd(a, 20, 8, WS_SIZE)
    a(f"""
    v_lshrrev_b32 v3, 3, v2          ; lane>>3
    v_lshl_add_u32 v3, v1, 4, v3
    v_lshrrev_b32 v6, 4, v2
    v_and_b32 v7, 7, v2
    v_xor_b32 v8, v7, v6             ; chunk j=0
    v_xor_b32 v9, 4, v8              ; chunk j=1
    v_lshlrev_b32 v4, 12, v3         ; row*4096
    v_lshl_add_u32 v5, v9, 4, v4
    v_add_u32 v5, {8 * 4096 - 1024}, v5
    v_lshl_add_u32 v4, v8, 4, v4
    s_lshl_b32 s24, s10, 18
    s_lshl_b32 s25, s15, 11
    """)
    a(f"""
    v_and_b32 v6, 31, v2
    v_lshrrev_b32 v7, 5, v2          ; g
    v_lshrrev_b32 v8, 1, v6
    v_and_b32 v8, 7, v8              ; swz
    v_lshl_or_b32 v7, v1, 1, v7      ; 2w+g
    v_xor_b32 v7, v7, v8             ; (2w+g)^swz
    v_lshlrev_b32 v6, 7, v6
    """)
    for p in range(4):
        a(f"v_xor_b32 v8, {2 * p}, v7")
        a(f"v_lshl_add_u32 v{10 + p}, v8, 4, v6")
    for p in range(4):
        a(f"v_xor_b32 v8, {p}, v1")
        a(f"v_lshlrev_b32 v8, 10, v8")
        a(f"v_lshl_add_u32 v{14 + p}, v2, 4, v8")
    a(f"""
    s_lshl_b32 s26, s12, 2
    s_add_u32 s26, s26, s15          ; nb
    s_lshl_b32 s27, s26, 17
    s_add_u32 s27, s27, {WS_XH}
    s_mov_b32 s28, 0x3f803f80
    v_mov_b32 v18, 0
    v_mov_b32 v19, 0
    v_lshlrev_b32 v20, 2, v2         ; lane*4
    v_add_u32 v20, {NS * 8192}, v20
    v_and_b32 v21, 31, v2
    v_lshlrev_b32 v21, 2, v21        ; (lane&31)*4
    v_add_u32 v21, {NS * 8192}, v21
    ds_write_b32 v20, v18
    """)
    for i in range(32):
        a(f"v_accvgpr_write_b32 a{i}, 0")
    ACC = 0
    BR = 32
    AF = 32
    EV = 96
    vm = VM()

    def dma(st, sreg_k):
        slot = st % NS
        a(f"s_add_u32 m0, s25, {slot * 8192}")
        a("s_nop 0")
        a(f"buffer_load_dwordx4 v4, s[16:19], s{sreg_k} offen lds")
        a(f"buffer_load_dwordx4 v5, s[16:19], s{sreg_k} offen offset:1024 lds")
        vm.issue(("d", st)); vm.issue(("d", st))

    def direct(st, sreg, p):
        slot = st % NS
        a(f"buffer_load_dwordx4 {ar(BR + slot * 16 + p * 4)}, v{14 + p}, s[20:23], s{sreg} offen")
        vm.issue(("x", st))

    def dsread(st, idx):
        p, tg = idx >> 1, idx & 1
        slot = st % NS
        a(f"ds_read_b128 {vr(AF + (st & 1) * 32 + idx * 4)}, v{10 + p} offset:{slot * 8192 + tg * 4096}")

    dma(0, 24)
    a("s_add_u32 s24, s24, 128")
    for v in range(1, NS):
        dma(v, 24)
        a("s_add_u32 s24, s24, 128")
        for p in range(4):
            direct(v - 1, 27, p)
        a("s_add_u32 s27, s27, 4096")
    n = vm.need({("d", 0)})
    a(f"s_waitcnt vmcnt({n}) lgkmcnt(0)")
    a("s_barrier")
    for idx in range(8):
        dsread(0, idx)

    def iteration(i, emit=True):
        nonlocal a
        out = Asm()
        save = a
        a = out
        n = vm.need({("d", i + 1), ("x", i)})
        a(f"s_waitcnt vmcnt({n}) lgkmcnt(0)")
        a("s_barrier")
        do_dma = i + NS < NIT
        do_dir = i + NS - 1 < NIT
        do_rd = i + 1 < NIT
        slot = i % NS
        fill = []
        if do_dma:
            fill.append(lambda: (dma(i + NS, 24), a("s_add_u32 s24, s24, 128")))
        rd = [(lambda idx=idx: dsread(i + 1, idx)) for idx in range(8)] if do_rd else []
        dr = [(lambda p=p: direct(i + NS - 1, 27, p)) for p in range(4)] if do_dir else []
        if do_dma:
            fill[0]()
        for idx in range(8):
            p, tg = idx >> 1, idx & 1
            a(f"v_mfma_f32_32x32x16_bf16 {ar(ACC + tg * 16, 16)}, {ar(BR + slot * 16 + p * 4)}, "
              f"{vr(AF + (i & 1) * 32 + idx * 4)}, {ar(ACC + tg * 16, 16)}")
            if rd:
                rd[idx]()
            if dr and idx >= 2 and idx < 6:
                dr[idx - 2]()
            if idx < 2:
                for k in range(4):
                    a(f"v_dot2c_f32_bf16 v{18 + tg}, s28, v{AF + (i & 1) * 32 + idx * 4 + k}")
        if dr:
            a("s_add_u32 s27, s27, 4096")
        a = save
        return out.lines

    bodies = [iteration(i) for i in range(NIT - NS)]
    for i in range(NS, NIT - NS):
        assert bodies[i] == bodies[i - NS], i
    ntrips = (NIT - NS) // NS
    a(f"s_mov_b32 s29, {ntrips}")
    a.label("S1_LOOP")
    for i in range(NS):
        a.lines += bodies[i]
    a("""
    s_sub_u32 s29, s29, 1
    s_cmp_lg_u32 s29, 0
    s_cbranch_scc1 S1_LOOP
    """)
    a(f"""
    v_lshrrev_b32 v22, 5, v2
    v_lshlrev_b32 v22, 5, v22        ; g*32 bytes
    s_lshl_b32 s30, s26, 7           ; nb*32*4
    s_add_u32 s30, s30, {WS_MODF}
    """)
    first = True
    for i in range(NIT - NS, NIT):
        a.lines += iteration(i)
        if first:
            first = False
            for c in range(2):
                for h in range(2):
                    a(f"buffer_load_dwordx4 {vr(EV + c * 8 + h * 4)}, v22, s[20:23], s30 offen offset:{2048 + c * 64 + h * 16}")
                    vm.issue("ev")
                    a(f"buffer_load_dwordx4 {vr(EV + 16 + c * 8 + h * 4)}, v22, s[20:23], s30 offen offset:{c * 64 + h * 16}")
                    vm.issue("ev")
    a(f"""
    ds_add_f32 v21, v18
    ds_add_f32 v21, v19 offset:128
    s_waitcnt lgkmcnt(0)
    s_barrier
    ds_read_b32 v18, v21
    ds_read_b32 v19, v21 offset:128
    s_cmp_eq_u32 s14, 0
    s_cselect_b32 s31, 1.0, -1.0
    """)
    a(f"""
    v_and_b32 v23, 15, v2
    v_lshlrev_b32 v23, 4, v23
    v_lshrrev_b32 v24, 4, v2
    v_and_b32 v24, 1, v24
    v_lshl_or_b32 v23, v24, 15, v23
    v_lshrrev_b32 v24, 5, v2
    v_lshl_or_b32 v23, v24, 8, v23
    s_lshl_b32 s32, s10, 17          ; tb64*4*32768
    s_lshl_b32 s33, s14, 4
    s_add_u32 s33, s33, s26
    s_lshl_b32 s33, s33, 10
    s_add_u32 s32, s32, s33
    s_add_u32 s32, s32, {WS_PQ}
    s_add_u32 s33, s32, 65536
    s_waitcnt vmcnt(0)
    """)
    for r in range(32):
        a(f"v_mul_f32 v{EV + r}, s31, v{EV + r}")
    a("s_waitcnt lgkmcnt(0)")
    T = 32
    for tg in range(2):
        for r in range(16):
            a(f"v_accvgpr_read_b32 v{T + tg * 16 + r}, a{ACC + tg * 16 + r}")
        for r in range(16):
            a(f"v_mul_f32 v{T + tg * 16 + r}, v{T + tg * 16 + r}, v{EV + r}")
        for r in range(16):
            a(f"v_fmac_f32 v{T + tg * 16 + r}, v{18 + tg}, v{EV + 16 + r}")
        for k in range(8):
            a(f"v_cvt_pk_bf16_f32 v{T + 32 + tg * 8 + k}, v{T + tg * 16 + 2 * k}, v{T + tg * 16 + 2 * k + 1}")
        for c in range(2):
            a(f"buffer_store_dwordx4 {vr(T + 32 + tg * 8 + c * 4)}, v23, s[20:23], s{32 + tg} offen offset:{c * 512}")
    a.label("S1_END")
    a("s_endpgm")
    return name, kernel_desc(name, 128, 32 + NS * 16), \
        f"; @launch kernel={name} grid=(256,1,1) block=(256,1,1) lds={NS * 8192 + 256}"


def gen_s2(a):
    name = "s2_kernel"
    kernel_head(a, name)
    a(f"""
    s_cmp_ge_u32 s2, 256
    s_cbranch_scc1 S2_END
    s_load_dwordx4 s[4:7], s[0:1], {KA_WDR}
    s_load_dwordx2 s[8:9], s[0:1], {KA_WS}
    s_load_dwordx2 s[34:35], s[0:1], {KA_X}
    s_and_b32 s10, s2, 7
    s_lshr_b32 s11, s2, 3
    s_and_b32 s12, s11, 7            ; eb
    s_lshr_b32 s13, s11, 3           ; tbl
    s_lshl_b32 s10, s10, 2
    s_add_u32 s10, s10, s13          ; tb64
    v_lshrrev_b32 v1, 6, v0
    v_and_b32 v2, 63, v0
    s_nop 0
    v_readfirstlane_b32 s15, v1      ; wave
    s_nop 3
    s_and_b32 s13, s15, 1            ; tg
    s_lshr_b32 s14, s15, 1           ; kh
    s_waitcnt lgkmcnt(0)
    s_cmp_eq_u32 s14, 0
    s_cselect_b32 s4, s4, s6
    s_cselect_b32 s5, s5, s7
    """)
    srd(a, 16, 4, 512 * 512 * 2)
    srd(a, 20, 8, WS_SIZE)
    srd(a, 36, 34, 2048 * 512 * 2)
    a(f"""
    s_lshl_b32 s24, s12, 6
    s_lshl_b32 s25, s13, 5
    s_add_u32 s24, s24, s25          ; e0 + 32tg
    v_lshrrev_b32 v3, 3, v2
    v_add_u32 v3, s24, v3            ; row q=0
    v_lshlrev_b32 v3, 10, v3         ; *1024
    v_lshrrev_b32 v8, 4, v2
    v_and_b32 v9, 7, v2
    v_xor_b32 v8, v9, v8
    v_xor_b32 v9, 4, v8
    v_lshl_add_u32 v4, v8, 4, v3
    v_lshl_add_u32 v5, v9, 4, v3
    v_add_u32 v5, 8192, v5
    v_add_u32 v6, 16384, v4
    v_add_u32 v7, 16384, v5
    s_lshl_b32 s25, s14, 16
    s_lshl_b32 s26, s13, 12
    s_add_u32 s25, s25, s26
    """)
    a(f"""
    v_and_b32 v3, 15, v2
    v_lshrrev_b32 v8, 4, v2          ; q
    v_lshrrev_b32 v9, 1, v3
    v_xor_b32 v8, v8, v9
    v_xor_b32 v9, 4, v8
    v_lshlrev_b32 v3, 7, v3
    s_lshl_b32 s26, s14, 16
    v_add_u32 v3, s26, v3
    v_lshl_add_u32 v10, v8, 4, v3
    v_lshl_add_u32 v11, v9, 4, v3
    v_lshlrev_b32 v12, 4, v2         ; lane*16
    """)
    a(f"""
    s_lshl_b32 s26, s10, 2
    s_lshl_b32 s27, s13, 1
    s_add_u32 s26, s26, s27
    s_lshl_b32 s27, s26, 15
    s_lshl_b32 s28, s14, 14
    s_add_u32 s27, s27, s28
    s_add_u32 s27, s27, {WS_PQ}
    """)
    for h in range(2):
        for g in range(4):
            a(f"s_add_u32 s{40 + h * 4 + g}, s27, {h * 32768 + g * 4096}")
    ACT = 0
    ACC = 128
    WF = 32
    for i in range(32):
        a(f"v_accvgpr_write_b32 a{ACC + i}, 0")
    vm = VM()

    def issue_block(b):
        for q in range(4):
            a(f"s_add_u32 m0, s25, {b * 8192 + q * 1024 - b * 128}")
            a("s_nop 0")
            a(f"buffer_load_dwordx4 v{4 + q}, s[16:19], 0 offen offset:{b * 128} lds")
            vm.issue(("d", b))
        for s in (2 * b, 2 * b + 1):
            for h in range(2):
                a(f"buffer_load_dwordx4 {ar(ACT + (s * 2 + h) * 4)}, v12, s[20:23], s{40 + h * 4 + (s >> 2)} offen offset:{(s & 3) * 1024}")
                vm.issue(("x", b))

    def dsread(b, idx):
        sp, T = idx >> 2, idx & 3
        a(f"ds_read_b128 {vr(WF + (b & 1) * 32 + idx * 4)}, v{10 + sp} offset:{b * 8192 + T * 2048}")

    PRE = 6
    for b in range(PRE):
        issue_block(b)
    n = vm.need({("d", 0)})
    a(f"s_waitcnt vmcnt({n})")
    a("s_barrier")
    for idx in range(8):
        dsread(0, idx)
    EX = 96
    EG = 104
    EH = 120
    for b in range(8):
        need = {("x", b)}
        if b + 1 < 8:
            need.add(("d", b + 1))
        n = vm.need(need)
        a(f"s_waitcnt vmcnt({n}) lgkmcnt(0)")
        if b + 1 < 8:
            a("s_barrier")
        if b + PRE < 8:
            issue_block(b + PRE)
        if b == 2:
            a(f"""
            s_lshl_b32 s28, s14, 4
            s_lshl_b32 s29, s13, 5
            s_add_u32 s28, s28, s29
            s_lshl_b32 s29, s10, 6
            s_add_u32 s28, s28, s29
            v_and_b32 v13, 15, v2
            v_add_u32 v13, s28, v13          ; token
            v_lshrrev_b32 v14, 4, v2         ; q
            v_lshlrev_b32 v15, 10, v13
            v_lshl_add_u32 v15, v14, 3, v15  ; token*1024 + q*8
            s_lshl_b32 s29, s12, 7           ; e0*2
            v_lshlrev_b32 v16, 4, v14        ; q*16
            s_lshl_b32 s30, s12, 8           ; e0*4
            s_add_u32 s30, s30, {WS_MODF + 4096}
            s_add_u32 s31, s30, 4096
            """)
            for T in range(4):
                a(f"buffer_load_dwordx2 {vr(EX + 2 * T, 2)}, v15, s[36:39], s29 offen offset:{T * 32}")
                vm.issue("ev")
                a(f"buffer_load_dwordx4 {vr(EG + 4 * T)}, v16, s[20:23], s30 offen offset:{T * 64}")
                vm.issue("ev")
                a(f"buffer_load_dwordx4 {vr(EH + 4 * T)}, v16, s[20:23], s31 offen offset:{T * 64}")
                vm.issue("ev")
        k = 0
        for sp in range(2):
            s = 2 * b + sp
            for T in range(4):
                for h in range(2):
                    a(f"v_mfma_f32_16x16x32_bf16 {ar(ACC + (h * 4 + T) * 4)}, {vr(WF + (b & 1) * 32 + (sp * 4 + T) * 4)}, "
                      f"{ar(ACT + (s * 2 + h) * 4)}, {ar(ACC + (h * 4 + T) * 4)}")
                if b + 1 < 8:
                    dsread(b + 1, k)
                    k += 1
    a("s_barrier")
    a(f"""
    s_lshl_b32 s28, s15, 12
    s_xor_b32 s29, s28, 8192
    v_add_u32 v17, s28, v12
    v_add_u32 v18, s29, v12
    s_nop 7
    s_cmp_eq_u32 s14, 0
    s_cbranch_scc1 S2_KH0
    """)
    for T in range(4):
        a(f"ds_write_b128 v17, {ar(ACC + (0 * 4 + T) * 4)} offset:{T * 1024}")
    for r in range(16):
        a(f"v_accvgpr_read_b32 v{32 + r}, a{ACC + 16 + r}")
    a("s_branch S2_X")
    a.label("S2_KH0")
    for T in range(4):
        a(f"ds_write_b128 v17, {ar(ACC + (1 * 4 + T) * 4)} offset:{T * 1024}")
    for r in range(16):
        a(f"v_accvgpr_read_b32 v{32 + r}, a{ACC + r}")
    a.label("S2_X")
    a("s_waitcnt lgkmcnt(0)")
    a("s_barrier")
    for T in range(4):
        a(f"ds_read_b128 {vr(48 + 4 * T)}, v18 offset:{T * 1024}")
    a("s_waitcnt vmcnt(0)")
    for T in range(4):
        for k in range(2):
            a(f"v_lshlrev_b32 v{64 + 4 * T + 2 * k}, 16, v{EX + 2 * T + k}")
            a(f"v_and_b32 v{65 + 4 * T + 2 * k}, 0xffff0000, v{EX + 2 * T + k}")
    a("s_waitcnt lgkmcnt(0)")
    for r in range(16):
        a(f"v_add_f32 v{32 + r}, v{32 + r}, v{48 + r}")
    for r in range(16):
        a(f"v_fmac_f32 v{64 + r}, v{32 + r}, v{EG + r}")
    for k in range(8):
        a(f"v_cvt_pk_bf16_f32 v{32 + k}, v{64 + 2 * k}, v{65 + 2 * k}")
    for k in range(8):
        a(f"v_lshlrev_b32 v{64 + 2 * k}, 16, v{32 + k}")
        a(f"v_and_b32 v{65 + 2 * k}, 0xffff0000, v{32 + k}")
    for r in range(16):
        a(f"v_mul_f32 v{48 + r}, v{64 + r}, v{EH + r}")
    for k in range(8):
        a(f"v_cvt_pk_bf16_f32 v{40 + k}, v{48 + 2 * k}, v{49 + 2 * k}")
    a(f"""
    s_add_u32 s28, s26, s14          ; tb16
    s_lshl_b32 s28, s28, 14
    s_lshl_b32 s29, s12, 11
    s_add_u32 s28, s28, s29
    s_add_u32 s29, s28, {WS_X1}
    s_add_u32 s28, s28, {WS_X1G}
    buffer_store_dwordx4 v[40:43], v12, s[20:23], s28 offen
    buffer_store_dwordx4 v[44:47], v12, s[20:23], s28 offen offset:1024
    buffer_store_dwordx4 v[32:35], v12, s[20:23], s29 offen
    buffer_store_dwordx4 v[36:39], v12, s[20:23], s29 offen offset:1024
    """)
    a("v_add_f32 v80, v64, v65")
    a("v_mul_f32 v81, v64, v64")
    a("v_fmac_f32 v81, v65, v65")
    for r in range(2, 16):
        a(f"v_add_f32 v80, v80, v{64 + r}")
        a(f"v_fmac_f32 v81, v{64 + r}, v{64 + r}")
    for op in ("v_permlane16_swap_b32", "v_permlane32_swap_b32"):
        a("v_mov_b32 v82, v80")
        a("v_mov_b32 v83, v81")
        a("s_nop 1")
        a(f"{op} v80, v82")
        a(f"{op} v81, v83")
        a("s_nop 1")
        a("v_add_f32 v80, v80, v82")
        a("v_add_f32 v81, v81, v83")
    a(f"""
    v_lshlrev_b32 v13, 6, v13        ; token*64
    s_lshl_b32 s28, s12, 3
    s_add_u32 s28, s28, {WS_ST}
    v_cmp_gt_u32 vcc, 16, v2
    s_and_saveexec_b64 s[30:31], vcc
    buffer_store_dwordx2 v[80:81], v13, s[20:23], s28 offen
    """)
    a.label("S2_END")
    a("s_endpgm")
    return name, kernel_desc(name, 136, 160), f"; @launch kernel={name} grid=(256,1,1) block=(256,1,1) lds=131072"


def gen_s3(a):
    name = "s3_kernel"
    kernel_head(a, name)
    UV = 98304
    a(f"""
    s_cmp_ge_u32 s2, 240
    s_cbranch_scc1 S3_END
    s_load_dwordx2 s[4:5], s[0:1], {KA_W1}
    s_load_dwordx2 s[8:9], s[0:1], {KA_WS}
    s_and_b32 s10, s2, 7
    s_lshr_b32 s11, s2, 3            ; j 0..29
    s_and_b32 s13, s11, 1            ; tbl
    s_lshr_b32 s12, s11, 1           ; cb 0..14
    s_lshl_b32 s10, s10, 1
    s_add_u32 s10, s10, s13          ; tb128
    v_lshrrev_b32 v1, 6, v0
    v_and_b32 v2, 63, v0
    s_nop 0
    v_readfirstlane_b32 s15, v1      ; wave
    v_mov_b32 v3, 0
    v_lshlrev_b32 v4, 2, v0
    v_add_u32 v4, {UV}, v4
    ds_write_b32 v4, v3
    s_waitcnt lgkmcnt(0)
    """)
    srd(a, 16, 4, 512 * 1376 * 2)
    srd(a, 20, 8, WS_SIZE)
    for i in range(3):
        a(f"""
        v_add_u32 v7, {64 * i}, v2
        v_mul_u32_u24 v8, 0xaaab, v7
        v_lshrrev_b32 v8, 19, v8         ; row
        v_mul_u32_u24 v9, 12, v8
        v_sub_u32 v9, v7, v9             ; pc
        v_lshrrev_b32 v7, 1, v8
        v_and_b32 v7, 2, v7
        v_xor_b32 v9, v9, v7             ; gc
        v_lshl_add_u32 v8, v1, 4, v8
        v_mul_u32_u24 v8, 2752, v8
        v_lshl_add_u32 v{4 + i}, v9, 4, v8
        """)
    a(f"""
    s_mul_i32 s24, s12, 192
    s_mul_i32 s25, s15, 3072
    """)
    a(f"""
    v_lshrrev_b32 v7, 2, v2          ; 4q + r
    v_mul_u32_u24 v7, 192, v7
    v_and_b32 v8, 3, v2
    v_lshl_add_u32 v7, v8, 3, v7
    v_lshrrev_b32 v8, 4, v2
    v_and_b32 v8, 1, v8
    v_lshl_add_u32 v10, v8, 5, v7
    v_xor_b32 v8, 1, v8
    v_lshl_add_u32 v11, v8, 5, v7
    v_add_u32 v12, 49152, v10
    v_add_u32 v13, 49152, v11
    v_lshlrev_b32 v14, 4, v2         ; lane*16
    """)
    a(f"""
    s_lshl_b32 s26, s10, 3
    s_lshl_b32 s27, s15, 1
    s_add_u32 s26, s26, s27
    s_lshl_b32 s27, s26, 14
    s_add_u32 s27, s27, {WS_X1G}
    """)
    for h in range(2):
        for g in range(4):
            a(f"s_add_u32 s{40 + h * 4 + g}, s27, {h * 16384 + g * 4096}")
    ACT = 0
    ACC = 128
    XAC = 176
    WF = 32
    XF = 80
    STV = 96
    for i in range(72):
        a(f"v_accvgpr_write_b32 a{ACC + i}, 0")
    vm = VM()
    a(f"""
    v_and_b32 v7, 15, v2
    v_cmp_eq_u32 vcc, 1, v7
    v_mov_b32 v8, 4096
    v_mov_b32 v9, 3072
    v_cndmask_b32 v8, v8, v9, vcc
    v_lshrrev_b32 v7, 4, v2
    v_lshl_add_u32 v15, v7, 3, v8    ; + q*8
    s_lshl_b32 s28, s15, 6           ; w*64 bytes
    s_add_u32 s28, s28, {WS_MOD16}
    """)
    for i in range(4):
        a(f"buffer_load_dwordx2 {vr(XF + 4 * i, 2)}, v15, s[20:23], s28 offen offset:{i * 256}")
        vm.issue("xf")
        a(f"buffer_load_dwordx2 {vr(XF + 4 * i + 2, 2)}, v15, s[20:23], s28 offen offset:{i * 256 + 32}")
        vm.issue("xf")

    def issue_block(b):
        a(f"s_add_u32 s29, s24, {b * 64 * 2752}")
        for i in range(3):
            a(f"s_add_u32 m0, s25, {b * 12288 + i * 1024}")
            a("s_nop 0")
            a(f"buffer_load_dwordx4 v{4 + i}, s[16:19], s29 offen lds")
            vm.issue(("d", b))
        for s in (2 * b, 2 * b + 1):
            for h in range(2):
                a(f"buffer_load_dwordx4 {ar(ACT + (s * 2 + h) * 4)}, v14, s[20:23], s{40 + h * 4 + (s >> 2)} offen offset:{(s & 3) * 1024}")
                vm.issue(("x", b))

    def trread(s, T, half):
        off = s * 6144 + half * 3072 + (T >> 1) * 64
        base = 10 + (T & 1)
        if off >= 49152:
            off -= 49152
            base += 2
        a(f"ds_read_b64_tr_b16 {vr(WF + (s & 1) * 24 + T * 4 + half * 2, 2)}, v{base} offset:{off}")

    PRE = 7
    for b in range(PRE):
        issue_block(b)
    n = vm.need({("d", 0)})
    a(f"s_waitcnt vmcnt({n})")
    a("s_barrier")
    for T in range(6):
        trread(0, T, 0); trread(0, T, 1)
    for s in range(16):
        b = s >> 1
        if s & 1 == 0:
            n = vm.need({("x", b), "xf"})
            a(f"s_waitcnt vmcnt({n}) lgkmcnt(0)")
            if b + PRE < 8:
                issue_block(b + PRE)
            if b == 1:
                a(f"""
                v_and_b32 v7, 15, v2
                v_lshlrev_b32 v16, 6, v7
                s_lshl_b32 s30, s26, 10
                s_add_u32 s30, s30, {WS_ST}
                """)
                for h in range(2):
                    for k in range(4):
                        a(f"buffer_load_dwordx4 {vr(STV + h * 16 + k * 4)}, v16, s[20:23], s30 offen offset:{h * 1024 + k * 16}")
                        vm.issue("st")
        else:
            if s + 1 < 16:
                n = vm.need({("d", b + 1)})
                a(f"s_waitcnt vmcnt({n}) lgkmcnt(0)")
                a("s_barrier")
            else:
                a("s_waitcnt lgkmcnt(0)")
        for T in range(6):
            for h in range(2):
                a(f"v_mfma_f32_16x16x32_bf16 {ar(ACC + (h * 6 + T) * 4)}, {vr(WF + (s & 1) * 24 + T * 4)}, "
                  f"{ar(ACT + (s * 2 + h) * 4)}, {ar(ACC + (h * 6 + T) * 4)}")
            if s + 1 < 16:
                trread(s + 1, T, 0); trread(s + 1, T, 1)
        a(f"s_cmp_lg_u32 s15, {s & 3}")
        a(f"s_cbranch_scc1 S3_SKIP{s}")
        for T in range(6):
            a(f"v_mfma_f32_16x16x32_bf16 {ar(XAC + T * 4)}, {vr(WF + (s & 1) * 24 + T * 4)}, "
              f"{vr(XF + (s >> 2) * 4)}, {ar(XAC + T * 4)}")
        a.label(f"S3_SKIP{s}")
    a(f"""
    v_and_b32 v7, 15, v2
    v_lshrrev_b32 v8, 4, v2
    v_mul_u32_u24 v9, 384, v7
    v_lshl_add_u32 v17, v8, 4, v9    ; n*384 + q*16
    v_add_u32 v17, {UV}, v17
    v_lshlrev_b32 v18, 4, v8         ; q*16
    v_add_u32 v18, {UV}, v18
    v_cmp_gt_u32 vcc, 2, v7
    s_nop 7
    """)
    for r in range(24):
        a(f"v_accvgpr_read_b32 v{32 + r}, a{XAC + r}")
    a("s_and_saveexec_b64 s[30:31], vcc")
    for T in range(6):
        for i in range(4):
            a(f"ds_add_f32 v17, v{32 + T * 4 + i} offset:{T * 64 + i * 4}")
    a("s_mov_b64 exec, s[30:31]")
    a("s_waitcnt lgkmcnt(0)")
    a("s_barrier")
    for T in range(6):
        a(f"ds_read_b128 {vr(32 + T * 4)}, v18 offset:{T * 64}")
        a(f"ds_read_b128 {vr(56 + T * 4)}, v18 offset:{384 + T * 64}")
    a("s_waitcnt vmcnt(0)")
    for h in range(2):
        b = STV + h * 16
        for k in range(1, 8):
            a(f"v_add_f32 v{b}, v{b}, v{b + 2 * k}")
            a(f"v_add_f32 v{b + 1}, v{b + 1}, v{b + 2 * k + 1}")
    for h in range(2):
        b = STV + h * 16
        a(f"""
        v_mul_f32 v{b}, 0x3b000000, v{b}             ; mean
        v_mul_f32 v{b + 1}, 0x3b000000, v{b + 1}     ; E[x^2]
        v_fma_f32 v{b + 1}, -v{b}, v{b}, v{b + 1}    ; var
        v_max_f32 v{b + 1}, 0, v{b + 1}
        v_add_f32 v{b + 1}, 0x3727c5ac, v{b + 1}
        v_rsq_f32 v{20 + h}, v{b + 1}
        s_nop 0
        v_mul_f32 v{22 + h}, v{20 + h}, v{b}
        v_sub_f32 v{22 + h}, 0, v{22 + h}
        """)
    a(f"""
    s_mul_i32 s28, s26, {43 * 1024}
    s_mul_i32 s29, s12, 3072
    s_add_u32 s28, s28, s29
    s_add_u32 s28, s28, {WS_HH}
    s_add_u32 s29, s28, {43 * 1024}
    s_waitcnt lgkmcnt(0)
    """)
    for h in range(2):
        for u in range(3):
            t0 = 96 + (h * 3 + u) * 0 + ((h * 3 + u) & 1) * 16
            for r in range(8):
                a(f"v_accvgpr_read_b32 v{t0 + r}, a{ACC + h * 24 + u * 8 + r}")
            for r in range(8):
                a(f"v_fma_f32 v{t0 + 8 + r}, v{22 + h}, v{32 + u * 8 + r}, v{56 + u * 8 + r}")
            for r in range(8):
                a(f"v_fmac_f32 v{t0 + 8 + r}, v{20 + h}, v{t0 + r}")
            for r in range(8):
                a(f"v_max_f32 v{t0 + 8 + r}, 0, v{t0 + 8 + r}")
            d = 80 + ((h * 3 + u) & 3) * 4
            for k in range(4):
                a(f"v_cvt_pk_bf16_f32 v{d + k}, v{t0 + 8 + 2 * k}, v{t0 + 9 + 2 * k}")
            if u > 0:
                a("s_cmp_eq_u32 s12, 14")
                a(f"s_cbranch_scc1 S3_NS{h}{u}")
            a(f"buffer_store_dwordx4 {vr(d)}, v14, s[20:23], s{28 + h} offen offset:{u * 1024}")
            if u > 0:
                a.label(f"S3_NS{h}{u}")
    a.label("S3_END")
    a("s_endpgm")
    return name, kernel_desc(name, 128, 200), f"; @launch kernel={name} grid=(240,1,1) block=(256,1,1) lds={UV + 1024}"


def gen_s4(a):
    name = "s4_kernel"
    kernel_head(a, name)
    NSL = 16
    a(f"""
    s_cmp_ge_u32 s2, 256
    s_cbranch_scc1 S4_END
    s_load_dwordx2 s[4:5], s[0:1], {KA_W2}
    s_load_dwordx2 s[8:9], s[0:1], {KA_WS}
    s_load_dwordx2 s[34:35], s[0:1], {KA_OUT}
    s_and_b32 s10, s2, 7
    s_lshr_b32 s11, s2, 3
    s_and_b32 s12, s11, 7            ; db
    s_lshr_b32 s13, s11, 3
    s_lshl_b32 s10, s10, 2
    s_add_u32 s10, s10, s13          ; tb64
    v_lshrrev_b32 v1, 6, v0
    v_and_b32 v2, 63, v0
    s_nop 0
    v_readfirstlane_b32 s15, v1
    s_nop 3
    s_and_b32 s13, s15, 1            ; tg
    s_lshr_b32 s14, s15, 1           ; kh
    s_waitcnt lgkmcnt(0)
    """)
    srd(a, 16, 4, 1376 * 512 * 2)
    srd(a, 20, 8, WS_SIZE)
    srd(a, 36, 34, 2048 * 512 * 2)
    a(f"""
    v_lshrrev_b32 v3, 3, v2
    v_lshrrev_b32 v4, 4, v2          ; (row>>1)&3
    v_lshlrev_b32 v4, 1, v4
    v_and_b32 v5, 7, v2
    v_xor_b32 v4, v5, v4             ; gc
    v_lshlrev_b32 v3, 10, v3
    v_lshl_add_u32 v4, v4, 4, v3
    v_add_u32 v5, {8192 - 1024}, v4
    s_mul_i32 s24, s14, {22 * 32 * 1024}
    s_lshl_b32 s25, s13, 14
    s_add_u32 s24, s24, s25
    s_lshl_b32 s25, s12, 7           ; d0*2
    s_add_u32 s24, s24, s25
    s_lshl_b32 s25, s14, 16
    s_lshl_b32 s26, s13, 11
    s_add_u32 s25, s25, s26
    """)
    a(f"""
    v_lshrrev_b32 v6, 2, v2          ; 4q+r
    v_lshrrev_b32 v7, 1, v6
    v_and_b32 v7, 3, v7              ; sw
    v_lshlrev_b32 v6, 7, v6
    v_and_b32 v8, 3, v2
    v_lshl_add_u32 v6, v8, 3, v6
    s_lshl_b32 s26, s14, 16
    v_add_u32 v6, s26, v6
    """)
    for T in range(4):
        a(f"v_xor_b32 v8, {T}, v7")
        a(f"v_lshl_add_u32 v{10 + T}, v8, 5, v6")
    a("v_lshlrev_b32 v14, 4, v2")
    a(f"""
    s_lshl_b32 s26, s10, 2
    s_lshl_b32 s27, s13, 1
    s_add_u32 s26, s26, s27
    s_mul_i32 s27, s26, {43 * 1024}
    s_mul_i32 s28, s14, {22 * 1024}
    s_add_u32 s27, s27, s28
    s_add_u32 s27, s27, {WS_HH}
    s_lshl_b32 s28, s14, 10
    """)
    for h in range(2):
        for g in range(6):
            a(f"s_add_u32 s{40 + h * 6 + g}, s27, {h * 43 * 1024 + g * 4096}")
        a(f"s_sub_u32 s{52 + h}, s{40 + h * 6 + 5}, s28")
    ACT = 0
    ACC = 176
    WF = 32
    for i in range(32):
        a(f"v_accvgpr_write_b32 a{ACC + i}, 0")
    vm = VM()
    NST = 22

    def issue_step(s):
        slot = s % NSL
        a(f"s_add_u32 s29, s24, {s * 32 * 1024}")
        a(f"s_add_u32 m0, s25, {slot * 4096}")
        a("s_nop 0")
        a(f"buffer_load_dwordx4 v4, s[16:19], s29 offen lds")
        a(f"buffer_load_dwordx4 v5, s[16:19], s29 offen offset:1024 lds")
        vm.issue(("d", s)); vm.issue(("d", s))
        for h in range(2):
            so = 40 + h * 6 + (s >> 2)
            if s == 21:
                so = 52 + h
            a(f"buffer_load_dwordx4 {ar(ACT + (s * 2 + h) * 4)}, v14, s[20:23], s{so} offen offset:{(s & 3) * 1024}")
            vm.issue(("x", s))

    def trread(s, T, half):
        slot = s % NSL
        a(f"ds_read_b64_tr_b16 {vr(WF + (s & 1) * 16 + T * 4 + half * 2, 2)}, v{10 + T} offset:{slot * 4096 + half * 2048}")

    PRE = 14
    for s in range(PRE):
        issue_step(s)
    n = vm.need({("d", 0), ("d", 1)})
    a(f"s_waitcnt vmcnt({n})")
    a("s_barrier")
    for T in range(4):
        trread(0, T, 0); trread(0, T, 1)
    EX = 64
    EG = 72
    nxt = PRE
    for s in range(NST):
        need = {("x", s)}
        bar = (s & 1) == 1 and s + 1 < NST
        if bar:
            need |= {("d", s + 1), ("d", s + 2)}
        n = vm.need(need)
        if n is None:
            a("s_waitcnt lgkmcnt(0)")
        else:
            a(f"s_waitcnt vmcnt({n}) lgkmcnt(0)")
        if bar:
            a("s_barrier")
            k = 0
            while nxt < NST and nxt - NSL <= s and k < 2:
                issue_step(nxt)
                nxt += 1
                k += 1
        if s == 9:
            a(f"""
            s_add_u32 s28, s26, s14
            s_lshl_b32 s28, s28, 14
            s_lshl_b32 s29, s12, 11
            s_add_u32 s28, s28, s29
            s_add_u32 s28, s28, {WS_X1}
            v_lshrrev_b32 v15, 4, v2
            v_lshlrev_b32 v16, 4, v15        ; q*16
            s_lshl_b32 s30, s12, 8
            s_add_u32 s30, s30, {WS_MODF + 5 * 2048}
            """)
            a(f"buffer_load_dwordx4 {vr(EX)}, v14, s[20:23], s28 offen")
            a(f"buffer_load_dwordx4 {vr(EX + 4)}, v14, s[20:23], s28 offen offset:1024")
            vm.issue("ev"); vm.issue("ev")
            for T in range(4):
                a(f"buffer_load_dwordx4 {vr(EG + 4 * T)}, v16, s[20:23], s30 offen offset:{T * 64}")
                vm.issue("ev")
        for T in range(4):
            for h in range(2):
                a(f"v_mfma_f32_16x16x32_bf16 {ar(ACC + (h * 4 + T) * 4)}, {vr(WF + (s & 1) * 16 + T * 4)}, "
                  f"{ar(ACT + (s * 2 + h) * 4)}, {ar(ACC + (h * 4 + T) * 4)}")
            if s + 1 < NST:
                trread(s + 1, T, 0); trread(s + 1, T, 1)
    assert nxt == NST
    a("s_barrier")
    a(f"""
    s_lshl_b32 s28, s15, 12
    s_xor_b32 s29, s28, 8192
    v_add_u32 v17, s28, v14
    v_add_u32 v18, s29, v14
    s_nop 7
    s_cmp_eq_u32 s14, 0
    s_cbranch_scc1 S4_KH0
    """)
    for T in range(4):
        a(f"ds_write_b128 v17, {ar(ACC + (0 * 4 + T) * 4)} offset:{T * 1024}")
    for r in range(16):
        a(f"v_accvgpr_read_b32 v{32 + r}, a{ACC + 16 + r}")
    a("s_branch S4_X")
    a.label("S4_KH0")
    for T in range(4):
        a(f"ds_write_b128 v17, {ar(ACC + (1 * 4 + T) * 4)} offset:{T * 1024}")
    for r in range(16):
        a(f"v_accvgpr_read_b32 v{32 + r}, a{ACC + r}")
    a.label("S4_X")
    a("s_waitcnt lgkmcnt(0)")
    a("s_barrier")
    for T in range(4):
        a(f"ds_read_b128 {vr(48 + 4 * T)}, v18 offset:{T * 1024}")
    a(f"""
    s_add_u32 s28, s26, s14
    s_lshl_b32 s28, s28, 4
    v_and_b32 v19, 15, v2
    v_add_u32 v19, s28, v19
    v_lshlrev_b32 v19, 10, v19
    v_lshl_add_u32 v19, v15, 3, v19
    s_lshl_b32 s29, s12, 7
    s_waitcnt vmcnt(0)
    """)
    for k in range(8):
        a(f"v_lshlrev_b32 v{88 + 2 * k}, 16, v{EX + k}")
        a(f"v_and_b32 v{89 + 2 * k}, 0xffff0000, v{EX + k}")
    a("s_waitcnt lgkmcnt(0)")
    for r in range(16):
        a(f"v_add_f32 v{32 + r}, v{32 + r}, v{48 + r}")
    for r in range(16):
        a(f"v_fmac_f32 v{88 + r}, v{32 + r}, v{EG + r}")
    for k in range(8):
        a(f"v_cvt_pk_bf16_f32 v{48 + k}, v{88 + 2 * k}, v{89 + 2 * k}")
    for T in range(4):
        a(f"buffer_store_dwordx2 {vr(48 + 2 * T, 2)}, v19, s[36:39], s29 offen offset:{T * 32}")
    a.label("S4_END")
    a("s_endpgm")
    return name, kernel_desc(name, 104, 208), f"; @launch kernel={name} grid=(256,1,1) block=(256,1,1) lds=131072"


def gen_nop(a, idx):
    name = f"nop{idx}_kernel"
    kernel_head(a, name)
    a("s_endpgm")
    return name, kernel_desc(name, 8, 0), f"; @launch kernel={name} grid=(256,1,1) block=(256,1,1) lds=0"


def main():
    out = sys.argv[1] if len(sys.argv) > 1 else f"cdna_kernels/{NAME}.s"
    nnop = int(sys.argv[2]) if len(sys.argv) > 2 else 0
    a = Asm()
    ks = [gen_k0(a), gen_s1(a), gen_s2(a), gen_s3(a), gen_s4(a)]
    for i in range(nnop):
        ks.append(gen_nop(a, i))
    head = "; adaLN + FNet + ReLU FFN, generated by dev/gen.py\n"
    head += "\n".join(k[2] for k in ks) + "\n"
    head += '.amdgcn_target "amdgcn-amd-amdhsa--gfx950"\n.text\n'
    tail = '.section .rodata,"a"\n' + "".join(k[1] for k in ks)
    open(out, "w").write(head + a.text() + tail)


if __name__ == "__main__":
    main()
```
